```python
import torch

def _softmax(x, axis=-1):
    return torch.softmax(x, dim=axis)
def _gelu(x):
    return torch.nn.functional.gelu(x, approximate="tanh")
def _silu(x):
    return torch.nn.functional.silu(x)
def _sigmoid(x):
    return torch.sigmoid(x)
def _layernorm(x, axis=-1, eps=1e-5):
    m = x.mean(dim=axis, keepdim=True)
    v = x.var(dim=axis, keepdim=True, unbiased=False)
    return (x - m) / torch.sqrt(v + eps)
def _scatter_add(tgt, idx, src, axis=0):
    return tgt.clone().index_add_(axis, idx, src)
def _segment_sum(src, seg, n):
    out = torch.zeros((n,) + src.shape[1:], dtype=src.dtype)
    return out.index_add_(0, seg, src)
def _pad(x, pw):
    flat = tuple(v for pair in reversed(pw) for v in pair)
    return torch.nn.functional.pad(x, flat)

kernel_name = 'standalone__mha_softmax__near_ridge'

def setup_inputs():

    _w = (lambda a: (lambda t: t.to(torch.bfloat16) if t.is_floating_point() else t)(torch.as_tensor(a)))
    B, H, Sq, Sk, D = 8, 32, 256, 512, 128
    return {
        "q": _w((lambda *s: torch.randn(*s, dtype=torch.bfloat16) * 0.8)(B, H, Sq, D)),
        "k": _w((lambda *s: torch.randn(*s, dtype=torch.bfloat16) * 0.8)(B, H, Sk, D)),
        "v": _w((lambda *s: torch.randn(*s, dtype=torch.bfloat16) * 0.05)(B, H, Sk, D)),
    }

def reference(q, k, v):
    scale = q.shape[-1] ** -0.5
    scores = torch.einsum("bhqd,bhkd->bhqk", q, k) * scale
    p = _softmax(scores, axis=-1)
    return torch.einsum("bhqk,bhkd->bhqd", p, v)
```

```python
import sys
def gen(name, body, iters=200, block=512, nv=244):
    o=[]
    e=lambda s:o.append('    '+s)
    o.append('; @launch grid=(256,1,1) block=(%d,1,1) lds=163840'%block)
    o.append('.amdgcn_target "amdgcn-amd-amdhsa--gfx950"\n.text\n.globl standalone__mha_softmax__near_ridge_kernel\n.p2align 8\n.type standalone__mha_softmax__near_ridge_kernel,@function\nstandalone__mha_softmax__near_ridge_kernel:')
    e('s_load_dwordx2 s[52:53], s[0:1], 40')
    e('s_load_dwordx2 s[4:5], s[0:1], 0')
    e('v_lshrrev_b32 v1, 6, v0')
    e('v_and_b32 v236, 63, v0')
    e('v_readfirstlane_b32 s28, v1')
    e('s_waitcnt lgkmcnt(0)')
    e('s_and_b32 s53, s53, 0xffff'); e('s_mov_b32 s54, 0x1000000'); e('s_mov_b32 s55, 0x20000')
    e('s_mov_b32 s12, s4'); e('s_and_b32 s13, s5, 0xffff'); e('s_mov_b32 s14, 0x1000000'); e('s_mov_b32 s15, 0x20000')
    e('v_lshlrev_b32 v239, 4, v0')
    e('s_lshl_b32 s3, s2, 16')
    for i in range(0,64,4):
        e('buffer_load_dwordx4 v[%d:%d], v239, s[12:15], s3 offen offset:%d'%(144+i,147+i,0))
        e('s_add_u32 s3, s3, 0x2000' if i%32!=28 else 's_sub_u32 s3, s3, 0xe000')
    e('s_waitcnt vmcnt(0)')
    for i in range(32): e('v_mov_b32 v%d, v%d'%(i,144+(i*7)%64))
    for i in range(16): e('v_mov_b32 v%d, v%d'%(128+i,144+(i*5+3)%64))
    for k in range(20):
        e('ds_write_b128 v239, v[%d:%d] offset:%d'%(144+4*(k%16),147+4*(k%16),(k%8)*8192))
        if k%8==7: e('v_add_u32 v239, 0x10000, v239')
    for i in range(32,128): e('v_mov_b32 v%d, 0'%i)
    for i in range(208,236): e('v_mov_b32 v%d, 0x3dcccccd'%i)
    e('v_lshlrev_b32 v208, 4, v236')
    e('v_lshlrev_b32 v209, 3, v236')
    e('s_mov_b32 s32, 0x3e000000')
    e('s_mov_b32 s34, 0')
    e('s_waitcnt lgkmcnt(0)')
    e('s_barrier')
    e('s_memrealtime s[58:59]'); e('s_memtime s[60:61]'); e('s_waitcnt lgkmcnt(0)')
    o.append('.p2align 6\nL_top:')
    for b in body: e(b)
    e('s_add_u32 s34, s34, 1'); e('s_cmp_lt_u32 s34, %d'%iters); e('s_cbranch_scc1 L_top')
    e('s_memrealtime s[48:49]'); e('s_memtime s[50:51]'); e('s_waitcnt lgkmcnt(0)')
    e('v_mov_b32 v237, s60'); e('v_mov_b32 v238, s58')
    e('s_mov_b64 exec, 2'); e('v_mov_b32 v237, s50'); e('v_mov_b32 v238, s48'); e('s_mov_b64 exec, -1')
    e('s_lshl_b32 s48, s2, 3'); e('s_add_u32 s48, s48, s28'); e('s_lshl_b32 s48, s48, 9')
    e('v_lshlrev_b32 v239, 2, v236')
    e('buffer_store_dword v237, v239, s[52:55], s48 offen')
    e('buffer_store_dword v238, v239, s[52:55], s48 offen offset:256')
    e('s_endpgm')
    o.append('''.section .rodata,"a"
.p2align 6
.amdhsa_kernel standalone__mha_softmax__near_ridge_kernel
  .amdhsa_next_free_vgpr %d
  .amdhsa_next_free_sgpr 64
  .amdhsa_accum_offset %d
  .amdhsa_group_segment_fixed_size 0
  .amdhsa_kernarg_size 48
  .amdhsa_user_sgpr_count 2
  .amdhsa_user_sgpr_kernarg_segment_ptr 1
  .amdhsa_system_sgpr_workgroup_id_x 1
.end_amdhsa_kernel'''%(nv,nv))
    open('work/%s.s'%name,'w').write('\n'.join(o)+'\n')

def m32(i):
    a=32+16*(i%4); return 'v_mfma_f32_32x32x16_bf16 v[%d:%d], v[%d:%d], v[%d:%d], v[%d:%d]'%(a,a+15,144+4*(i%16),147+4*(i%16),4*(i%8),4*(i%8)+3,a,a+15)
def m16(i):
    a=32+4*(i%16); return 'v_mfma_f32_16x16x32_bf16 v[%d:%d], v[%d:%d], v[%d:%d], v[%d:%d]'%(a,a+3,144+4*((i//2)%16),147+4*((i//2)%16),4*(i%8),4*(i%8)+3,a,a+3)
def fma(i): r=96+i%32; return 'v_fma_f32 v%d, v%d, s32, v%d'%(r,r,210)
def add(i): r=96+i%32; return 'v_add_f32 v%d, v%d, v%d'%(r,r,211)
def ex(i): r=96+i%32; return 'v_exp_f32 v%d, v%d'%(r,212+i%8)
def cvt(i): return 'v_cvt_pk_bf16_f32 v%d, v%d, v%d'%(128+i%16,96+(2*i)%32,97+(2*i)%32)
def mx(i): return 'v_max3_f32 v%d, v%d, v%d, v%d'%(220+i%4,96+(2*i)%32,97+(2*i)%32,220+i%4)
def pka(i): r=96+2*(i%16); return 'v_pk_add_f32 v[%d:%d], v[%d:%d], v[210:211]'%(r,r+1,r,r+1)
def pkf(i): r=96+2*(i%16); return 'v_pk_fma_f32 v[%d:%d], v[%d:%d], v[212:213], v[210:211]'%(r,r+1,r,r+1)
def rd(i): return 'ds_read_b128 v[%d:%d], v208 offset:%d'%(144+4*(i%16),147+4*(i%16),1024*(i%32))
def tr(i): return 'ds_read_b64_tr_b16 v[%d:%d], v209 offset:%d'%(144+2*(i%32),145+2*(i%32),512*(i%64))

tests={}
N=16
tests['fma']=[fma(i) for i in range(64)]
tests['add']=[add(i) for i in range(64)]
tests['exp']=[ex(i) for i in range(64)]
tests['cvt']=[cvt(i) for i in range(64)]
tests['max3']=[mx(i) for i in range(64)]
tests['pka']=[pka(i) for i in range(64)]
tests['pkf']=[pkf(i) for i in range(64)]
tests['m32']=[m32(i) for i in range(N)]
tests['m16']=[m16(i) for i in range(2*N)]
for k in (2,4,6,8,10,12):
    b=[]
    for i in range(N):
        b.append(m32(i)); b+= [add(i*k+j) for j in range(k)]
    tests['m32_add%d'%k]=b
    b=[]
    for i in range(2*N):
        b.append(m16(i)); b+= [add(i*k//2+j) for j in range(k//2)]
    tests['m16_add%d'%k]=b
for k in (1,2,3,4):
    b=[]
    for i in range(N):
        b.append(m32(i)); b+= [ex(i*k+j) for j in range(k)]
    tests['m32_exp%d'%k]=b
def mix(mf, per, lds=True, maxx=True, fm=True):
    b=[]
    for i in range(N):
        g=[]
        if fm: g.append(fma(i))
        g+= [ex(i+8), add(i+16)]
        if i%2: g.append(cvt(i//2))
        elif maxx: g.append(mx(i//2))
        if lds:
            if (i//8)%2==0: g.append(rd(i))
            else: g+= [tr(2*i), tr(2*i+1)]
        if per==1:
            b.append(m32(i)); b+=g
        else:
            h=(len(g)+1)//2
            b.append(m16(2*i)); b+=g[:h]; b.append(m16(2*i+1)); b+=g[h:]
        if lds and i%8==7: b.append('s_waitcnt lgkmcnt(0)')
    return b
tests['mix32']=mix(m32,1); tests['mix16']=mix(m16,2)
tests['mix32_nolds']=mix(m32,1,lds=False); tests['mix16_nolds']=mix(m16,2,lds=False)
tests['mix32_nomax']=mix(m32,1,maxx=False); tests['mix16_nomax']=mix(m16,2,maxx=False)
tests['mix32_min']=mix(m32,1,maxx=False,fm=False); tests['mix16_min']=mix(m16,2,maxx=False,fm=False)
if __name__=='__main__':
    import subprocess
    names=[]
    for n,b in tests.items():
        for blk in (512,256):
            nm='ub_%s_%d'%(n,blk); gen(nm,b,block=blk); subprocess.check_call(['asm.sh',nm]); names.append(nm)
    open('ub_list.txt','w').write('\n'.join(names)+'\n')
    print(names)
```
